```python
import torch

def _softmax(x, axis=-1):
    return torch.softmax(x, dim=axis)
def _gelu(x):
    return torch.nn.functional.gelu(x, approximate="tanh")
def _silu(x):
    return torch.nn.functional.silu(x)
def _sigmoid(x):
    return torch.sigmoid(x)
def _layernorm(x, axis=-1, eps=1e-5):
    m = x.mean(dim=axis, keepdim=True)
    v = x.var(dim=axis, keepdim=True, unbiased=False)
    return (x - m) / torch.sqrt(v + eps)
def _scatter_add(tgt, idx, src, axis=0):
    return tgt.clone().index_add_(axis, idx, src)
def _segment_sum(src, seg, n):
    out = torch.zeros((n,) + src.shape[1:], dtype=src.dtype)
    return out.index_add_(0, seg, src)
def _pad(x, pw):
    flat = tuple(v for pair in reversed(pw) for v in pair)
    return torch.nn.functional.pad(x, flat)

kernel_name = 'parallel_sum__mha_block_cached__dense_activation_silu__decode'

def setup_inputs():

    _w = (lambda a: (lambda t: t.to(torch.bfloat16) if t.is_floating_point() else t)(torch.as_tensor(a)))
    def _A_setup():
        B, Sq, D = 8, 1, 448
        H, Sk, Dh = 16, 4096, 256
        return {
            "x": _w((lambda *s: torch.randn(*s, dtype=torch.bfloat16) * 0.05)(B, Sq, D)),
            "k_cache": _w((lambda *s: torch.randn(*s, dtype=torch.bfloat16) * 3.2)(B, H, Sk, Dh)),
            "v_cache": _w((lambda *s: torch.randn(*s, dtype=torch.bfloat16) * 0.8)(B, H, Sk, Dh)),
            "wq": _w((lambda *s: torch.randn(*s, dtype=torch.bfloat16) * 3.2)(D, H * Dh) * (D ** -0.5)),
            "wo": _w((lambda *s: torch.randn(*s, dtype=torch.bfloat16) * 0.8)(H * Dh, D) * ((H * Dh) ** -0.5)),
        }
    _A_in = _A_setup()

    def _B_setup():
        B, S, D, F = 8, 1, 448, 1792
        return {
            "x": _w((lambda *s: torch.randn(*s, dtype=torch.bfloat16) * 0.05)(B, S, D)),
            "w1": _w((lambda *s: torch.randn(*s, dtype=torch.bfloat16) * 3.2)(D, F) * (D ** -0.5)),
            "w2": _w((lambda *s: torch.randn(*s, dtype=torch.bfloat16) * 0.4)(F, D) * (F ** -0.5)),
        }
    _B_in = _B_setup()

    return {
        "A_x": _A_in["x"],
        "A_k_cache": _A_in["k_cache"],
        "A_v_cache": _A_in["v_cache"],
        "A_wq": _A_in["wq"],
        "A_wo": _A_in["wo"],
        "B_x": _B_in["x"],
        "B_w1": _B_in["w1"],
        "B_w2": _B_in["w2"],
    }

def reference(A_x, A_k_cache, A_v_cache, A_wq, A_wo, B_x, B_w1, B_w2):
    def _A_ref(x, k_cache, v_cache, wq, wo):
        B, Sq, D = x.shape
        H, Dh = 16, 256
        q = (lambda x, *d: x.permute(*d))((x @ wq).reshape(B, Sq, H, Dh), 0, 2, 1, 3)
        scores = torch.einsum("bhqd,bhkd->bhqk", q, k_cache) * (Dh ** -0.5)
        p = _softmax(scores, axis=-1)
        o = torch.einsum("bhqk,bhkd->bhqd", p, v_cache)
        return (lambda x, *d: x.permute(*d))(o, 0, 2, 1, 3).reshape(B, Sq, H * Dh) @ wo

    def _B_ref(x, w1, w2):
        h = torch.einsum("bsd,df->bsf", x, w1)
        h = _silu(h)
        out = torch.einsum("bsf,fd->bsd", h, w2)
        return out

    x = A_x
    xn = _layernorm(x, axis=-1)
    return x + _A_ref(xn, A_k_cache, A_v_cache, A_wq, A_wo) + _B_ref(xn, B_w1, B_w2)
```

```python
import re
TRANS = ("v_exp_f32", "v_log_f32", "v_rcp_f32", "v_rsq_f32", "v_sqrt_f32", "v_sin_f32", "v_cos_f32")
def regs(tok, p):
    tok = tok.strip()
    tok = tok.lstrip("-")
    if tok.startswith("abs(") or tok.startswith("|"): tok = tok.strip("abs()|")
    m = re.fullmatch(p + r"(\d+)", tok)
    if m: return [int(m.group(1))]
    m = re.fullmatch(p + r"\[(\d+):(\d+)\]", tok)
    if m: return list(range(int(m.group(1)), int(m.group(2)) + 1))
    return []
def sregs(tok):
    tok = tok.strip()
    if tok == "vcc": return ["vcc"]
    if tok == "exec": return ["exec"]
    if tok == "m0": return ["m0"]
    return regs(tok, "s")
class Ins:
    pass
def parse(text):
    t = text.split(";")[0].strip()
    op, _, rest = t.partition(" ")
    ops = [o.strip() for o in rest.split(",")] if rest.strip() else []
    mods = ""
    if ops:
        last = ops[-1].split(None, 1)
        if len(last) > 1 and not ops[-1].startswith("quad_perm"):
            ops[-1] = last[0]; mods = last[1]
    full = rest
    I = Ins(); I.op = op; I.vw = []; I.vr = []; I.sw = []; I.sr = []; I.vC = []; I.vAB = []; I.dpp = False
    I.kind = "s"; I.states = 1
    base = op.replace("_e32", "").replace("_e64", "").replace("_dpp", "")
    I.base = base
    if op == "s_nop":
        I.states = int(ops[0], 0) + 1; return I
    if op.startswith("s_"):
        if ops and not op.startswith(("s_cmp", "s_cbranch", "s_branch", "s_waitcnt", "s_barrier", "s_sleep", "s_setprio", "s_endpgm", "s_bitcmp")):
            I.sw = sregs(ops[0])
        return I
    if op.startswith("v_"):
        I.kind = "valu"
        if "_dpp" in op:
            I.dpp = True
            ops = [o.strip() for o in re.split(r"\s+(?:row_|quad_perm|wave_)", full)[0].split(",")]
        if op.startswith("v_mfma"):
            I.kind = "mfma"; I.vw = regs(ops[0], "v"); I.vAB = regs(ops[1], "v") + regs(ops[2], "v"); I.vC = regs(ops[3], "v"); I.vr = I.vAB + I.vC
            return I
        if op.startswith("v_cmp"):
            I.sw = sregs(ops[0]); srcs = ops[1:]
        elif op.startswith(("v_readlane", "v_readfirstlane")):
            I.sw = sregs(ops[0]); srcs = ops[1:]
        elif op.startswith("v_permlane"):
            I.vw = regs(ops[0], "v") + regs(ops[1], "v"); srcs = ops
        else:
            I.vw = regs(ops[0], "v"); srcs = ops[1:]
            if base.startswith(("v_dot2c", "v_fmac", "v_writelane")): I.vC = list(I.vw)
            if base == "v_dot2_f32_bf16": I.vC = regs(ops[3], "v"); srcs = ops[1:3]
        for s in srcs:
            I.vAB += regs(s, "v"); I.sr += sregs(s)
        I.dppsrc = regs(srcs[0], "v") if I.dpp else []
        I.vr = I.vAB + I.vC
        return I
    if op.startswith("ds_"):
        I.kind = "ds"
        if op.startswith(("ds_read", "ds_add_rtn", "ds_bpermute", "ds_swizzle")):
            I.vw = regs(ops[0], "v"); srcs = ops[1:]
        else: srcs = ops
        for s in srcs: I.vr += regs(s, "v")
        return I
    if op.startswith(("buffer_", "global_")):
        I.kind = "vmem"; I.lds = " lds" in (" " + mods + " ") or mods.endswith("lds")
        I.wide_store = []
        if op.startswith("buffer_load"):
            if I.lds: srcs = ops
            else: I.vw = regs(ops[0], "v"); srcs = ops[1:]
        elif op.startswith("global_load"):
            I.vw = regs(ops[0], "v"); srcs = ops[1:]
        elif "atomic" in op and "sc0" in mods:
            I.vw = regs(ops[0], "v"); srcs = ops[1:] if op.startswith("global") else ops
        else:
            srcs = ops
            if op.endswith(("x3", "x4")):
                I.wide_store = regs(ops[0] if op.startswith("buffer") else ops[1], "v")
        for s in srcs:
            I.vr += regs(s, "v"); I.sr += sregs(s)
        return I
    raise ValueError("unparsed: " + text)

class Emit:
    def __init__(self):
        self.L = []; self.h = []; self.nnop = 0; self.hop = None
    def raw(self, s): self.L.append(s)
    def label(self, name):
        self.L.append(name + ":")
    def need(self, I):
        n = 0; d = 0
        for P in reversed(self.h):
            if d >= 20: break
            req = 0
            pv = set(P.vw)
            if P.kind == "valu":
                isdot = P.base.startswith("v_dot")
                if I.kind == "valu":
                    if I.dpp and pv & set(I.dppsrc): req = max(req, 2)
                    if I.op.startswith(("v_readlane", "v_readfirstlane")) and pv & set(I.vr): req = max(req, 1)
                    if I.op.startswith("v_permlane") and pv & set(I.vr): req = max(req, 2)
                    if P.base in TRANS and I.base not in TRANS and pv & set(I.vr): req = max(req, 1)
                    if set(P.sw) & set(I.sr): req = max(req, 4 if I.op.startswith(("v_readlane", "v_writelane")) else 2)
                if isdot:
                    if I.kind == "valu" and I.base == P.base:
                        if pv & set(I.vAB): req = max(req, 3)
                    elif pv & (set(I.vr) | set(I.vw)): req = max(req, 3)
                if I.kind == "mfma" and pv & set(I.vr): req = max(req, 2)
                if I.kind == "vmem" and set(P.sw) & set(I.sr): req = max(req, 5)
            if P.kind == "mfma":
                if I.kind == "mfma":
                    if pv & set(I.vAB): req = max(req, 8)
                    if pv & set(I.vC) and sorted(I.vC) != sorted(P.vw): req = max(req, 6)
                elif pv & (set(I.vr) | set(I.vw)): req = max(req, 8)
                if I.kind == "valu" and set(P.vC) & set(I.vw): req = max(req, 3)
            if P.kind == "vmem" and P.wide_store and set(P.wide_store) & set(I.vw): req = max(req, 2)
            if P.kind == "s" and "m0" in P.sw:
                if (I.kind == "vmem" and I.lds) or (I.kind == "valu" and "m0" in I.sr): req = max(req, 1)
            n = max(n, req - d)
            d += P.states
        return n
    def hop_begin(self, name, on=True):
        self.hop = dict(name=name, k=0, cnt=0, kind="execz", hold=False) if on else None
        if on: self._stub()
    def hop_kind(self, k):
        if self.hop: self.hop["kind"] = k
    def hop_hold(self, h):
        if self.hop: self.hop["hold"] = h
    def _stub(self, target=None):
        H = self.hop
        self.L.append(f"{H['name']}_{H['k']}:")
        H.setdefault("pos", []).append(len(self.L))
        self.L.append(f"  s_cbranch_{H['kind']} " + (target or f"{H['name']}_{H['k']+1}"))
        self.h.append(parse("s_cbranch_execz x")); H["k"] += 1; H["cnt"] = 0
    def hop_end(self, ret):
        if self.hop: self._stub(ret); self.hop = None
    def hop_end_split(self, nseg, ret):
        if not self.hop: return None
        self._stub(ret(nseg - 1))
        H = self.hop; n = len(H["pos"]); ent = [f"{H['name']}_0"]
        for s in range(nseg - 1):
            c = (s + 1) * n // nseg - 1
            self.L[H["pos"][c]] = f"  s_cbranch_execz {ret(s)}"
            ent.append(f"{H['name']}_{c+1}")
        self.hop = None
        return ent
    def i(self, text):
        if self.hop:
            op = text.split()[0]
            sz = 4 if (op.startswith(("s_waitcnt", "s_c", "s_bitcmp", "v_add_f32", "v_mov_b32", "v_mul_f32", "v_addc", "v_exp", "v_sub_f32", "v_dot2c")) and "_dpp" not in op and "0x" not in text) else 8
            if self.hop["cnt"] + sz > self.hop.get("lim", 52) and not self.hop["hold"]: self._stub()
            self.hop["cnt"] += sz
        I = parse(text)
        n = self.need(I)
        if n > 0:
            self.nnop += 1
            if self.hop: self.hop["cnt"] += 4
            N = parse(f"s_nop {n-1}"); self.h.append(N); self.L.append(f"  s_nop {n-1}")
        self.h.append(I); self.h = self.h[-24:]
        self.L.append("  " + text)
    def __call__(self, *texts):
        for t in texts: self.i(t)
    def text(self): return "\n".join(self.L) + "\n"
```

```python
import sys, json
sys.path.insert(0, "gen")
from emit import Emit
KN = "parallel_sum__mha_block_cached__dense_activation_silu__decode_kernel"
HEADER = open("parallel_sum__mha_block_cached__dense_activation_silu__decode.s.ref").read().split("; Override launch geometry")[0]

F_XN, F_Q, F_LAST, F_ST, F_PUB, F_VERD, F_RED, F_TAG, F_PROG, F_MODE = 0, 4, 8, 12, 16, 20, 24, 28, 32, 36
L_ST = 0x40
L_Q = 0x100
L_XN = 0x400
L_O = 0x2000
O_STRIDE = 528
L_SC = 0x3400
L_QP = 0x7400
L_STG = 0x8400
L_B6 = 0x18400
LDS_BYTES = 0x20400
W_ST = 0; W_FP = 0x10000; W_QT = 0x100000; W_HT = 0x200000; W_Y = 0x300000; W_SIZE = 0x400000
L_H = L_QP + 0x400
TAGX = 0x5bd1e995
DELTA = 1000; WINDOW = 6000
LOG2E = 1.4426950408889634
import struct
def f32(x): return "0x%08x" % struct.unpack("<I", struct.pack("<f", x))[0]
CEXP = f32(LOG2E / 16.0)
DPPF = "row_mask:0xf bank_mask:0xf"

def gen(D=5, FILL=48, stamps=0, hd=2, prio=1, lag2=3, noffn=0, nowo=0, wopol='nt', spin=40, hsleep=8, wodelay=1, qsleep=16, xbit=1, xpol='nt', pure=0, pat=None, patv=None, late=0, w2pol='nt', dbgt=0, diag=None, dwg=None, prog=0, warm=1, w2d=4, lsleep=8, early=1, gpol='sc1', spol='sc1', ilv=1, f2skip=0, wsoff=0, ppol='nt', qskip=0, odd=0, pmode=None, wmode=None, hlate=0, hdep=14, ctl=0, nsamp=32, cpol='nt', cinit=0, cfirst=0, cstep=1, pat0=None, n0=48, ypk=0, bar0=0, sprint=0, sp0=480, peel=0, w1=0, w2=0, stw=0, tk1=0):
    if pmode is None: pmode = 1 if odd else 0
    if wmode is None: wmode = 1 if odd else 0
    E = Emit()
    E.raw(HEADER.rstrip())
    E.raw(f"; @launch grid=(256,1,1) block=(512,1,1) lds={LDS_BYTES}")
    E.raw('.amdgcn_target "amdgcn-amd-amdhsa--gfx950"')
    E.raw(".text"); E.raw(f".globl {KN}"); E.raw(".p2align 8"); E.raw(f".type {KN},@function"); E.raw(f"{KN}:")
    uid = [0]
    def lab(p):
        uid[0] += 1; return f"L_{p}_{uid[0]}"
    def stamp(idx):
        if stamps or dbgt or diag is not None:
            E("s_memrealtime s[92:93]", "s_waitcnt lgkmcnt(0)", f"v_writelane_b32 v63, s92, {idx}")
    def poll_lds(off, val, tmp="v3", st="s36", slp=1):
        l = lab("poll")
        E.label(l)
        E(f"ds_read_b32 {tmp}, v61 offset:{off}", "s_waitcnt lgkmcnt(0)", f"v_readfirstlane_b32 {st}, {tmp}",
          f"s_cmp_eq_u32 {st}, {val}")
        d = lab("pd")
        E(f"s_cbranch_scc1 {d}", f"s_sleep {slp}", f"s_branch {l}")
        E.label(d)
    def lds_inc(off):
        E("s_mov_b64 exec, 1", f"ds_add_u32 v61, v62 offset:{off}", "s_mov_b64 exec, -1")
    def allsum(v, t):
        for r in (8, 4, 2, 1): E(f"v_add_f32_dpp {v}, {v}, {v} row_ror:{r} {DPPF}")
        E(f"v_mov_b32 {t}, {v}", f"v_permlane16_swap_b32 {v}, {t}", f"v_add_f32 {v}, {v}, {t}")
        E(f"v_mov_b32 {t}, {v}", f"v_permlane32_swap_b32 {v}, {t}", f"v_add_f32 {v}, {v}, {t}")
    def rnd(v, t=None):
        E(f"v_cvt_pk_bf16_f32 {v}, {v}, {v}", f"v_and_b32 {v}, 0xffff0000, {v}")

    E("s_cmp_ge_u32 s2, 256", "s_cbranch_scc1 L_end")
    E("s_memrealtime s[90:91]")
    E("s_load_dwordx16 s[4:19], s[0:1], 0", "s_load_dwordx4 s[20:23], s[0:1], 64", "s_load_dwordx2 s[24:25], s[0:1], 80")
    E("v_lshrrev_b32 v1, 6, v0", "v_and_b32 v0, 63, v0", "v_readfirstlane_b32 s26, v1")
    E("v_mov_b32 v61, 0", "v_mov_b32 v62, 1", "v_mov_b32 v63, 0")
    E("s_lshr_b32 s27, s2, 5", "s_and_b32 s30, s2, 7", "s_bfe_u32 s31, s2, 0x20003")
    E("s_lshl_b32 s77, s30, 2", "s_add_u32 s77, s77, s31")
    if xbit == 0: E("s_lshl_b32 s31, s31, 3", "s_add_u32 s30, s30, s31")
    elif xbit == 2: E("s_mov_b32 s30, s77")
    else: E("s_lshl_b32 s30, s30, 1", "s_and_b32 s78, s31, 1", "s_add_u32 s30, s30, s78", "s_lshr_b32 s31, s31, 1", "s_lshl_b32 s31, s31, 4", "s_add_u32 s30, s30, s31")
    E("s_lshr_b32 s28, s30, 1")
    if w1 or w2: E(f"s_mov_b32 s54, {W_SIZE}", "s_mov_b32 s55, 0x20000")
    E("s_cmp_ge_u32 s26, 4", "s_cbranch_scc1 L_helper")

    RB = 64
    BLK = 32 * 4096
    E("s_lshl_b32 s31, s27, 5", "s_add_u32 s31, s31, s30", "s_lshl_b32 s31, s31, 20")
    E("s_lshl_b32 s33, s26, 12", "v_lshlrev_b32 v1, 4, v0", "v_add_u32 v1, s33, v1")
    E(f"v_lshlrev_b32 v2, 2, v0", "v_add_u32 v2, s33, v2", f"v_add_u32 v2, {L_SC}, v2")
    for t in range(8): E(f"s_mov_b32 s{56+t}, {t*16384}")
    E("s_mov_b32 s40, 0xcccccccc", "s_mov_b32 s41, 0xcccccccc", "s_mov_b32 s42, 0xaaaaaaaa", "s_mov_b32 s43, 0xaaaaaaaa")
    E(f"s_mov_b32 s46, {BLK}", "s_mov_b32 s47, 0x20000", f"s_mov_b32 s50, {BLK}", "s_mov_b32 s51, 0x20000")
    E("s_waitcnt lgkmcnt(0)")
    E("s_add_u32 s44, s6, s31", "s_addc_u32 s45, s7, 0")
    E(f"s_add_u32 s48, s44, {BLK}", "s_addc_u32 s49, s45, 0")
    E("s_add_u32 s52, s8, s31", "s_addc_u32 s53, s9, 0")
    if prio: E(f"s_setprio {prio}")
    st = dict(ip=0, cp=0, blk=0)
    XT = max(FILL, 32)
    def rslot(j): return (j + XT - 32) % 32 if j < 32 else (j if j < XT else j % 32)
    def prev_occ(j):
        k = j - 1
        while k >= 0 and rslot(k) != rslot(j): k -= 1
        return k
    def issue():
        j = st["ip"]; slot = j % 32; b = j // 32
        assert b in (st["blk"], st["blk"] + 1), (j, st)
        assert prev_occ(j) < st["cp"], ("ring overflow", st)
        srd = "s[44:47]" if b == st["blk"] else "s[48:51]"
        r = RB + 4 * rslot(j)
        E(f"buffer_load_dwordx4 v[{r}:{r+3}], v1, {srd}, s{56+(slot>>2)} offen offset:{(slot&3)*1024} nt")
        st["ip"] += 1
    def advance(static_next_is_v=None):
        E("s_mov_b32 s44, s48", "s_mov_b32 s45, s49")
        st["blk"] += 1
        if static_next_is_v is None: static_next_is_v = (st["blk"] + 1 == 8)
        if static_next_is_v: E("s_mov_b32 s48, s52", "s_mov_b32 s49, s53")
        else: E(f"s_add_u32 s48, s48, {BLK}", "s_addc_u32 s49, s49, 0")
        if ctl and cst["on"]: E("s_cmp_lg_u32 s94, 0")
    def kreduce(goff_imm):
        a = [f"v{16+k}" for k in range(16)]
        for k in range(8):
            E(f"v_add_f32_dpp {a[k]}, {a[k]}, {a[k]} row_ror:8 row_mask:0xf bank_mask:0x3")
        for k in range(8):
            E(f"v_add_f32_dpp {a[k]}, {a[k+8]}, {a[k+8]} row_ror:8 row_mask:0xf bank_mask:0xc")
        for k in range(4):
            E(f"v_add_f32_dpp {a[k+8]}, {a[k]}, {a[k]} row_half_mirror row_mask:0xf bank_mask:0x5")
        for k in range(4):
            E(f"v_add_f32_dpp {a[k+8]}, {a[k+4]}, {a[k+4]} row_half_mirror row_mask:0xf bank_mask:0xa")
        c = a[8:12]
        for k in range(4):
            E(f"v_add_f32_dpp {c[k]}, {c[k]}, {c[k]} quad_perm:[2,3,0,1] {DPPF}")
        E(f"v_cndmask_b32 {a[0]}, {c[0]}, {c[2]}, s[40:41]", f"v_cndmask_b32 {a[1]}, {c[1]}, {c[3]}, s[40:41]")
        E(f"v_add_f32_dpp {a[0]}, {a[0]}, {a[0]} quad_perm:[1,0,3,2] {DPPF}", f"v_add_f32_dpp {a[1]}, {a[1]}, {a[1]} quad_perm:[1,0,3,2] {DPPF}")
        E(f"v_cndmask_b32 {a[0]}, {a[0]}, {a[1]}, s[42:43]")
        E(f"v_mov_b32 {a[1]}, {a[0]}", f"v_permlane16_swap_b32 {a[0]}, {a[1]}", f"v_add_f32 v3, {a[0]}, {a[1]}")
        E(f"ds_write_b32 v2, v3 offset:{goff_imm}")
    def consume(loop_goff=None):
        j = st["cp"]; r = RB + 4 * rslot(j); i = j % 16
        if j < 256:
            E(f"v_mov_b32 v{16+i}, 0")
            for q in range(4): E(f"v_dot2c_f32_bf16 v{16+i}, v{r+q}, v{4+q}")
            if i == 15:
                g = j // 16
                kreduce(g * 256 if loop_goff is None else (g & 1) * 256)
        else:
            gs = (j // 16) & 1
            for q in range(4):
                E(f"v_dot2c_f32_bf16_dpp v{8+2*q}, v{32+2*gs}, v{r+q} row_newbcast:{i} {DPPF}",
                  f"v_dot2c_f32_bf16_dpp v{9+2*q}, v{33+2*gs}, v{r+q} row_newbcast:{i} {DPPF}")
        st["cp"] += 1
    cst = dict(on=False, n=0)
    def resample():
        E("s_waitcnt lgkmcnt(0)", "v_readfirstlane_b32 s94, v60", f"ds_read_b32 v60, v61 offset:{F_MODE}", "s_cmp_lg_u32 s94, 0")
    def wait_flow():
        if ctl:
            if not cst["on"]: E(f"s_waitcnt vmcnt({D-2})"); return
            if st["ip"] % 8 == 4: resample()
            l = lab("dp")
            E(f"s_cbranch_scc1 {l}", f"s_waitcnt vmcnt({D-2})")
            E.label(l)
            E(f"s_waitcnt vmcnt({D-1})")
            return
        p = pat if (st["ip"] < 256 or patv is None) else patv
        if pat0 is not None and st["ip"] < n0: p = pat0
        x = D - 1 if p is None else p[st["ip"] % len(p)]
        assert x <= D - 1
        E(f"s_waitcnt vmcnt({x})")
    def step(n_consume=1, loop_goff=None):
        if st["ip"] < 512:
            wait_flow()
            assert st["cp"] + n_consume - 1 <= st["ip"] - D, (st, n_consume)
            if prev_occ(st["ip"]) < st["cp"] and not late:
                if st["ip"] // 32 > st["blk"] + 1: advance()
                issue()
                for _ in range(n_consume): consume(loop_goff)
            else:
                for _ in range(n_consume): consume(loop_goff)
                if st["ip"] // 32 > st["blk"] + 1: advance()
                issue()
        else:
            E(f"s_waitcnt vmcnt({st['ip'] - 1 - (st['cp'] + n_consume - 1)})")
            for _ in range(n_consume): consume(loop_goff)
    def load_p(off0):
        E(f"ds_read_b32 v32, v2 offset:{off0}", f"ds_read_b32 v34, v2 offset:{off0+256}", "s_waitcnt lgkmcnt(0)",
          "v_lshlrev_b32 v33, 16, v32", "v_lshlrev_b32 v35, 16, v34")

    for _ in range(D - 1 if ctl else (D if pat is None else (pat0 or pat)[0] + 1)): issue()
    E("s_cmp_lg_u32 s26, 0", "s_cbranch_scc1 L_s_nz")
    E("v_lshlrev_b32 v3, 2, v0", "v_mov_b32 v8, 0", "v_writelane_b32 v8, s90, 7", "s_mov_b32 exec_lo, 0xffff", "s_mov_b32 exec_hi, 0", "ds_write_b32 v3, v8", "s_mov_b64 exec, -1", "s_waitcnt lgkmcnt(0)")
    E.label("L_s_nz")
    E("s_barrier")
    for r in range(8, 16): E(f"v_mov_b32 v{r}, 0")
    while st["ip"] < FILL:
        wait_flow(); issue()
    stamp(1)
    poll_lds(F_Q, 1 if hlate else 2)
    E("v_and_b32 v3, 31, v0", "v_lshlrev_b32 v3, 4, v3", f"ds_read_b128 v[4:7], v3 offset:{L_Q}", "s_waitcnt lgkmcnt(0)")
    stamp(2)
    E.hop_begin("L_s1", bool(w1))
    while st["ip"] - st["cp"] > D + 1 or (st["ip"] - st["cp"] == D + 1):
        step(2)
    while st["cp"] % 32 or st["cp"] < 64: step(1)
    while st["blk"] < st["cp"] // 32: advance()
    E(f"v_add_u32 v2, {st['cp'] * 16}, v2")
    E(f"s_mov_b32 s34, {st['blk']}")
    E.label("L_kloop")
    save = dict(st)
    for _ in range(32): step(1, loop_goff=True)
    assert st["blk"] == save["blk"]
    E("v_add_u32 v2, 512, v2")
    if prog: E("s_add_u32 m0, s34, 3", "s_memrealtime s[92:93]", "s_waitcnt lgkmcnt(0)", "v_writelane_b32 v63, s92, m0")
    E("s_mov_b32 s44, s48", "s_mov_b32 s45, s49", f"s_add_u32 s48, s48, {BLK}", "s_addc_u32 s49, s49, 0",
      "s_add_u32 s34, s34, 1", "s_cmp_eq_u32 s34, 7", "s_cselect_b32 s48, s52, s48", "s_cselect_b32 s49, s53, s49",
      "s_cmp_lt_u32 s34, 8", "s_cbranch_scc1 L_kloop")
    st.update(cp=256, ip=256 + D, blk=8)
    S1 = E.hop_end_split(2, lambda k: f"L_s1r{k}")
    E.hop_begin("L_s2", bool(w2))
    stamp(3)
    E("v_subrev_u32 v2, 4096, v2")
    S = [f"v{32+g}" for g in range(16)]
    def pump():
        if st["ip"] - st["cp"] < D + lag2:
            wait_flow(); issue()
    for g in range(16): E(f"ds_read_b32 {S[g]}, v2 offset:{g*256}")
    pump()
    E("s_waitcnt lgkmcnt(0)")
    for g in range(0, 16, 2):
        E(f"v_cvt_pk_bf16_f32 v3, {S[g]}, {S[g+1]}", f"v_lshlrev_b32 {S[g]}, 16, v3", f"v_and_b32 {S[g+1]}, 0xffff0000, v3")
    E(f"v_max3_f32 v16, {S[0]}, {S[1]}, {S[2]}")
    for g in range(3, 15, 2): E(f"v_max3_f32 v16, v16, {S[g]}, {S[g+1]}")
    E(f"v_max_f32 v16, v16, {S[15]}")
    for r in (8, 4, 2, 1): E(f"v_max_f32_dpp v16, v16, v16 row_ror:{r} {DPPF}")
    E("v_mov_b32 v17, v16", "v_permlane32_swap_b32 v16, v17", "v_max_f32 v16, v16, v17")
    pump()
    E(f"s_mov_b32 s35, {CEXP}")
    for g in range(16): E(f"v_sub_f32 {S[g]}, {S[g]}, v16")
    for g in range(16): E(f"v_mul_f32 {S[g]}, s35, {S[g]}")
    for g in range(16): E(f"v_exp_f32 {S[g]}, {S[g]}")
    pump()
    E(f"v_add_f32 v17, {S[0]}, {S[1]}")
    for g in range(2, 16): E(f"v_add_f32 v17, v17, {S[g]}")
    for r in (8, 4, 2, 1): E(f"v_add_f32_dpp v17, v17, v17 row_ror:{r} {DPPF}")
    E("v_mov_b32 v18, v17", "v_permlane32_swap_b32 v17, v18", "v_add_f32 v17, v17, v18")
    for g in range(16): E(f"v_cvt_pk_bf16_f32 {S[g]}, {S[g]}, v61")
    for g in range(16): E(f"ds_write_b32 v2, {S[g]} offset:{g*256}")
    E("s_lshl_b32 s35, s26, 3", "v_mov_b32 v3, s35", "s_mov_b64 exec, 1", f"ds_write_b64 v3, v[16:17] offset:{L_ST}",
      "s_waitcnt lgkmcnt(0)", f"ds_add_u32 v61, v62 offset:{F_ST}", "s_mov_b64 exec, -1")
    pump()
    load_p(0)
    if ctl:
        E(f"v_mov_b32 v60, {cinit}", f"s_mov_b32 s94, {cinit}", "s_cmp_lg_u32 s94, 0"); cst["on"] = True
    while st["ip"] - st["cp"] > D: step(2)
    while st["cp"] < 288: step(1)
    while st["blk"] < st["cp"] // 32: advance()
    E("s_mov_b32 s34, 9")
    E.label("L_vloop")
    if ctl: E("s_cmp_lg_u32 s94, 0")
    E("v_add_u32 v2, 512, v2")
    save = dict(st)
    wait_flow(); issue(); load_p(0); consume()
    for _ in range(31): step(1)
    assert st["blk"] == save["blk"]
    if prog: E("s_add_u32 m0, s34, 2", "s_memrealtime s[92:93]", "s_waitcnt lgkmcnt(0)", "v_writelane_b32 v63, s92, m0")
    if ctl: lds_inc(F_PROG)
    E("s_mov_b32 s44, s48", "s_mov_b32 s45, s49", f"s_add_u32 s48, s48, {BLK}", "s_addc_u32 s49, s49, 0",
      "s_add_u32 s34, s34, 1", f"s_cmp_lt_u32 s34, {15-peel}", "s_cbranch_scc1 L_vloop")
    st.update(cp=480 - 32 * peel, ip=480 - 32 * peel + D, blk=15 - peel)
    if ctl: E("s_cmp_lg_u32 s94, 0")
    wait_flow(); issue(); load_p(512); consume()
    if sprint:
        c0 = st["cp"] - 1
        while st["ip"] < 512:
            if st["cp"] % 32 == 0: load_p(512 + (st["cp"] - c0) * 16)
            if st["cp"] < sp0: step(1); continue
            for _ in range(2 if st["ip"] - st["cp"] <= sprint else 1):
                if st["ip"] < 512:
                    if st["ip"] // 32 > st["blk"] + 1: advance(False)
                    issue()
            E(f"s_waitcnt vmcnt({st['ip'] - 1 - st['cp']})"); consume()
    while st["ip"] < 512: step(1)
    if early: lds_inc(F_LAST)
    while st["cp"] < 512: step(1)
    if not early: lds_inc(F_LAST)
    stamp(4)
    for q in range(4): E(f"v_cvt_pk_bf16_f32 v{16+q}, v{8+2*q}, v{9+2*q}")
    E("v_lshrrev_b32 v3, 5, v0", f"v_mul_u32_u24 v3, {O_STRIDE}, v3", "v_and_b32 v2, 31, v0", "v_lshl_add_u32 v3, v2, 4, v3",
      f"s_mul_i32 s35, s26, {2*O_STRIDE}", "v_add_u32 v3, s35, v3", f"ds_write_b128 v3, v[16:19] offset:{L_O}")
    S2 = E.hop_end_split(8, lambda k: f"L_s2r{k}")
    if dbgt or diag is not None: E("s_lshl_b32 s35, s26, 8", "v_lshlrev_b32 v3, 2, v0", "v_add_u32 v3, s35, v3", f"ds_write_b32 v3, v63 offset:{L_QP}")
    E("s_waitcnt lgkmcnt(0)", "s_barrier")
    if stamps:
        E("s_cmp_lg_u32 s26, 0", "s_cbranch_scc1 L_end")
        E("v_writelane_b32 v63, s90, 0", "s_add_u32 s24, s24, 0x20000000", "s_addc_u32 s25, s25, 0", "s_lshl_b32 s35, s2, 8", "v_lshlrev_b32 v3, 2, v0", "v_add_u32 v3, s35, v3", "v_add_u32 v3, 0x10000, v3", "global_store_dword v3, v63, s[24:25]")
    E("s_endpgm")

    E.label("L_helper")
    E("s_sub_u32 s29, s26, 4")
    E("v_cmp_gt_u32 s[38:39], 56, v0")
    E("v_lshlrev_b32 v1, 4, v0", "v_mov_b32 v2, 0x7ffffff0", "v_cndmask_b32 v1, v2, v1, s[38:39]")
    E("s_mul_i32 s35, s29, 1792")
    E("s_lshl_b32 s33, s29, 14", f"s_add_u32 s33, s33, {L_STG}")
    E("s_waitcnt lgkmcnt(0)")
    BAR = "s_nop 0" if bar0 else "s_barrier"
    if bar0: E("s_barrier")
    E("s_mov_b32 s44, s4", "s_mov_b32 s45, s5", "s_mov_b32 s46, 7168", "s_mov_b32 s47, 0x20000")
    E("s_mov_b32 s73, s35", "s_mov_b32 s69, 0", "s_and_b32 s86, s2, 1", "s_bfe_u32 s87, s2, 0x20001", "s_bfe_u32 s88, s2, 0x20003")
    if odd >= 3: E("s_cmp_eq_u32 s86, 0", "s_cbranch_scc1 L_h_nox")
    if pure != 1: E(f"buffer_load_dwordx4 v[8:11], v1, s[44:47], s35 offen {xpol}", f"buffer_load_dwordx4 v[12:15], v1, s[44:47], s35 offen offset:896 {xpol}")
    E.label("L_h_nox")
    E(f"s_add_u32 s52, s24, {wsoff}", "s_addc_u32 s53, s25, 0", f"s_mov_b32 s54, {W_SIZE}", "s_mov_b32 s55, 0x20000")
    E("s_mov_b32 s51, 0x20000")
    if w1 or w2: E("s_mov_b32 s48, s4", "s_mov_b32 s49, s5", "s_mov_b32 s50, 0")
    QB = 64
    if pure:
        E(BAR, "s_waitcnt vmcnt(0)", "s_cmp_ge_u32 s29, 2", "s_cbranch_scc1 L_h_ffdone")
        lds_inc(F_Q)
        E("s_branch L_h_ffdone")
    E("s_mov_b32 s64, 0")
    if odd >= 3:
        E("s_cmp_eq_u32 s86, 1", "s_cbranch_scc1 L_h_isodd", BAR, "s_cmp_ge_u32 s29, 2", "s_cbranch_scc1 L_h_ffdone", "s_branch L_h_pdone")
        E.label("L_h_isodd")
    if odd >= 2: E("s_cmp_eq_u32 s86, 0", "s_cbranch_scc1 L_h_nop", "s_bitcmp0_b32 s29, 0", "s_cbranch_scc1 L_h_rq")
    else: E("s_cmp_eq_u32 s29, 0", "s_cbranch_scc1 L_h_rq")
    E("s_cmp_lg_u32 s29, 1", "s_cbranch_scc1 L_h_nop")
    if pmode == 2: E("s_add_u32 s37, s86, 3", "s_cmp_ge_u32 s27, s37", "s_cbranch_scc1 L_h_nop", "s_mul_i32 s66, s87, 7", "s_add_u32 s66, s66, s27", "s_mul_i32 s37, s86, 3", "s_add_u32 s66, s66, s37", "s_mov_b32 s37, s88")
    elif pmode == 3: E("s_mul_i32 s37, s86, 3", "s_add_u32 s37, s37, 2", "s_cmp_ge_u32 s27, s37", "s_cbranch_scc1 L_h_nop", "s_mul_i32 s66, s87, 7", "s_add_u32 s66, s66, s27", "s_lshl_b32 s37, s86, 1", "s_add_u32 s66, s66, s37", "s_mov_b32 s37, s88")
    elif pmode == 1: E("s_cmp_eq_u32 s86, 0", "s_cbranch_scc1 L_h_nop", "s_cmp_ge_u32 s27, 7", "s_cbranch_scc1 L_h_nop", "s_mul_i32 s66, s87, 7", "s_add_u32 s66, s66, s27", "s_mov_b32 s37, s88")
    else: E("s_cmp_ge_u32 s77, 28", "s_cbranch_scc1 L_h_nop", "s_cmp_ge_u32 s27, 4", "s_cbranch_scc1 L_h_nop", "s_mov_b32 s66, s77", "s_mov_b32 s37, s27")
    E("s_lshl_b32 s35, s66, 2", "s_add_u32 s35, s35, s37",
      "s_lshl_b32 s36, s35, 5", "s_add_u32 s48, s16, s36", "s_addc_u32 s49, s17, 0", f"s_sub_u32 s50, {448*3584}, s36", "s_mov_b32 s65, 3584",
      "s_lshl_b32 s66, s66, 11", "s_lshl_b32 s37, s37, 6", "s_add_u32 s66, s66, s37", f"s_add_u32 s66, s66, {W_HT}", "s_mov_b32 s67, 256", "s_branch L_h_dma")
    E.label("L_h_rq")
    if odd >= 2: E("s_lshl_b32 s35, s27, 1", "s_lshr_b32 s36, s29, 1", "s_add_u32 s35, s35, s36", "s_lshl_b32 s66, s87, 2", "s_add_u32 s66, s66, s88")
    else: E("s_lshl_b32 s35, s27, 1", "s_and_b32 s36, s30, 1", "s_add_u32 s35, s35, s36", "s_mov_b32 s66, s28")
    E("s_lshl_b32 s36, s66, 9", "s_lshl_b32 s37, s35, 5", "s_add_u32 s36, s36, s37",
      "s_add_u32 s48, s10, s36", "s_addc_u32 s49, s11, 0", f"s_sub_u32 s50, {448*8192}, s36", "s_mov_b32 s65, 8192",
      "s_lshl_b32 s66, s66, 10", "s_lshl_b32 s37, s35, 6", "s_add_u32 s66, s66, s37", f"s_add_u32 s66, s66, {W_QT}", "s_mov_b32 s67, 16384")
    E.label("L_h_dma")
    E("s_mov_b32 s64, 1", "v_lshrrev_b32 v4, 1, v0", "v_mul_lo_u32 v4, s65, v4", "v_and_b32 v5, 1, v0", "v_lshl_add_u32 v4, v5, 4, v4",
      "s_lshl_b32 s36, s65, 5", "s_mov_b32 s37, 0", "s_mov_b32 m0, s33")
    if hlate: E("s_cmp_eq_u32 s29, 1", "s_cbranch_scc1 L_h_nop")
    if qskip & 1: E("s_waitcnt vmcnt(0)")
    if qskip & 4: E("s_cmp_eq_u32 s29, 1", "s_cselect_b32 s50, 0, s50")
    for t in range(0 if qskip & 1 else 14):
        E(f"buffer_load_dwordx4 v4, s[48:51], s37 offen {ppol} lds")
        if t < 13: E("s_add_u32 m0, m0, 1024", "s_add_u32 s37, s37, s36")
    E(BAR, "s_waitcnt vmcnt(14)", "s_branch L_h_ln")
    E.label("L_h_nop")
    E(BAR, "s_waitcnt vmcnt(0)")
    E.label("L_h_ln")
    X = [[f"v{16+8*r+e}" for e in range(8)] for r in range(2)]
    for r in range(2):
        for q in range(4):
            E(f"v_lshlrev_b32 {X[r][2*q]}, 16, v{8+4*r+q}", f"v_and_b32 {X[r][2*q+1]}, 0xffff0000, v{8+4*r+q}")
    for r in range(2):
        s = f"v{32+r}"
        E(f"v_add_f32 {s}, {X[r][0]}, {X[r][1]}")
        for e in range(2, 8): E(f"v_add_f32 {s}, {s}, {X[r][e]}")
    allsum("v32", "v34"); allsum("v33", "v35")
    E(f"s_mov_b32 s35, {f32(1.0/448)}")
    E("v_mul_f32 v32, s35, v32", "v_mul_f32 v33, s35, v33")
    for r in range(2):
        s = f"v{34+r}"
        E(f"v_mov_b32 {s}, 0")
        for e in range(8): E(f"v_sub_f32 v36, {X[r][e]}, v{32+r}", f"v_fmac_f32 {s}, v36, v36")
        E(f"v_cndmask_b32 {s}, v61, {s}, s[38:39]")
    allsum("v34", "v36"); allsum("v35", "v37")
    for r in range(2):
        v = f"v{34+r}"; m = f"v{32+r}"
        E(f"v_mul_f32 {v}, s35, {v}"); rnd(v); rnd(m)
        E(f"v_add_f32 {v}, {f32(1e-5)}, {v}"); rnd(v)
        E(f"v_sqrt_f32 {v}, {v}"); rnd(v)
        E(f"v_rcp_f32 v{36+r}, {v}")
    for r in range(2):
        den = f"v{34+r}"; rc = f"v{36+r}"; m = f"v{32+r}"
        for e in range(8): E(f"v_sub_f32 {X[r][e]}, {X[r][e]}, {m}")
        for q in range(4):
            E(f"v_cvt_pk_bf16_f32 v38, {X[r][2*q]}, {X[r][2*q+1]}", f"v_lshlrev_b32 {X[r][2*q]}, 16, v38", f"v_and_b32 {X[r][2*q+1]}, 0xffff0000, v38")
        for e in range(8):
            E(f"v_mul_f32 v38, {X[r][e]}, {rc}", f"v_fma_f32 v39, -v38, {den}, {X[r][e]}", f"v_fma_f32 {X[r][e]}, v39, {rc}, v38")
        for q in range(4): E(f"v_cvt_pk_bf16_f32 v{8+4*r+q}, {X[r][2*q]}, {X[r][2*q+1]}")
    E("v_lshlrev_b32 v5, 4, v0", "v_add_u32 v5, s73, v5")
    E("s_mov_b64 exec, s[38:39]", f"ds_write_b128 v5, v[8:11] offset:{L_XN}", f"ds_write_b128 v5, v[12:15] offset:{L_XN+896}", "s_mov_b64 exec, -1",
      "s_waitcnt lgkmcnt(0)")
    if odd >= 3: E("s_cmp_eq_u32 s69, 1", "s_cbranch_scc1 L_h_qfb2")
    lds_inc(F_XN)
    E("s_sub_u32 s35, s29, s64", "s_cmp_ge_i32 s35, 2", "s_cbranch_scc1 L_h_ffdone")
    poll_lds(F_XN, 4)
    stamp(1)
    def silu(h, o):
        E(f"v_mul_f32 v16, s35, {h}", "v_exp_f32 v16, v16", "v_add_f32 v16, 1.0, v16", "v_rcp_f32 v17, v16",
          f"v_mul_f32 v18, {h}, v17", f"v_fma_f32 v19, -v18, v16, {h}", "v_fma_f32 v19, v19, v17, v18",
          "v_cmp_class_f32 vcc, v19, 3", f"v_cndmask_b32 {o}, v19, v18, vcc")
    E("s_cmp_eq_u32 s64, 0", "s_cbranch_scc1 L_h_pdone")
    if hlate:
        E("s_cmp_lg_u32 s29, 1", "s_cbranch_scc1 L_h_dmad")
        if hlate == 2: poll_lds(F_Q, 1)
        E("s_lshl_b32 s36, s65, 5", "s_mov_b32 s37, 0", "s_mov_b32 m0, s33")
        for t in range(14):
            if t >= hdep: E(f"s_waitcnt vmcnt({hdep-1})")
            E(f"buffer_load_dwordx4 v4, s[48:51], s37 offen {ppol} lds")
            if t < 13: E("s_add_u32 m0, m0, 1024", "s_add_u32 s37, s37, s36")
        E.label("L_h_dmad")
    E("v_and_b32 v7, 7, v0", "v_mul_u32_u24 v4, 896, v7", "v_lshrrev_b32 v5, 4, v0", "v_lshl_add_u32 v4, v5, 4, v4")
    for t in range(14): E(f"ds_read_b128 v[{64+4*t}:{67+4*t}], v4 offset:{L_XN+64*t}")
    E("v_bfe_u32 v6, v0, 2, 2", "v_lshlrev_b32 v6, 5, v6", "v_and_b32 v3, 3, v0", "v_lshl_add_u32 v6, v3, 3, v6", "v_lshl_add_u32 v6, v5, 8, v6", "v_add_u32 v6, s33, v6")
    E("v_mul_lo_u32 v7, s67, v7", "v_lshl_add_u32 v7, v5, 4, v7", "v_and_b32 v3, 8, v0", "v_cmp_eq_u32 vcc, 0, v3", "v_cndmask_b32 v7, v2, v7, vcc", "s_waitcnt lgkmcnt(0)")
    for hf in range(2):
        for t in range(7 * hf, 7 * hf + 7):
            r = 128 + 4 * t
            E(f"s_waitcnt vmcnt({13-t})", f"ds_read_b64_tr_b16 v[{r}:{r+1}], v6 offset:{t*1024}", f"ds_read_b64_tr_b16 v[{r+2}:{r+3}], v6 offset:{t*1024+128}")
        if hf == 1: E("s_memrealtime s[70:71]")
        E("s_waitcnt lgkmcnt(0)")
        for t in range(7 * hf, 7 * hf + 7):
            d = 32 + 4 * (t & 1); r = 128 + 4 * t
            E(f"v_mfma_f32_16x16x32_bf16 v[{d}:{d+3}], v[{r}:{r+3}], v[{64+4*t}:{67+4*t}], {'0' if t < 2 else f'v[{d}:{d+3}]'}")
    E(f"s_xor_b32 s71, s70, {TAGX}", "v_mov_b32 v9, s70", "v_mov_b32 v11, s71")
    for e in range(4): E(f"v_add_f32 v{32+e}, v{32+e}, v{36+e}")
    E("s_cmp_lg_u32 s29, 1", "s_cbranch_scc1 L_h_pst", f"s_mov_b32 s35, {f32(-LOG2E)}")
    for e in range(4):
        rnd(f"v{32+e}"); silu(f"v{32+e}", f"v{32+e}")
    E.label("L_h_pst")
    E("v_cvt_pk_bf16_f32 v8, v32, v33", "v_cvt_pk_bf16_f32 v10, v34, v35", f"buffer_store_dwordx4 v[8:11], v7, s[52:55], s66 offen {spol}" if not qskip & 2 else "s_nop 0")
    E.label("L_h_pdone")
    stamp(9)
    E(f"s_sub_u32 s72, s90, {DELTA}", f"s_mov_b32 s74, {DELTA + WINDOW}", f"s_mov_b32 s75, {TAGX}")
    def tagcheck(r, first, a="v50", t1="v51", t2="v52"):
        E(f"v_subrev_u32 {t1}, s72, v{r+1}", f"v_xor_b32 {t2}, v{r+1}, v{r+3}", f"v_cmp_le_u32 vcc, s74, {t1}", f"v_xor_b32 {t2}, s75, {t2}", f"v_cndmask_b32 {t1}, v61, v62, vcc")
        E(f"v_or_b32 {a}, {t1}, {t2}" if first else f"v_or3_b32 {a}, {a}, {t1}, {t2}")
    E("s_cmp_eq_u32 s29, 1", "s_cbranch_scc1 L_h_ffn", "s_cmp_eq_u32 s29, 2", "s_cbranch_scc1 L_h_ffdone")
    E("s_lshl_b32 s35, s27, 14", "s_lshl_b32 s36, s28, 10", "s_add_u32 s35, s35, s36", f"s_add_u32 s35, s35, {W_QT}", "v_lshlrev_b32 v4, 4, v0", f"s_mov_b32 s76, {spin}")
    if qskip & 2: E("s_branch L_h_qok")
    E.label("L_h_qpoll")
    E("s_cmp_eq_u32 s76, 0", "s_cbranch_scc1 L_h_qfb", "s_sub_u32 s76, s76, 1")
    if qsleep: E(f"s_sleep {qsleep}")
    E(f"buffer_load_dwordx4 v[64:67], v4, s[52:55], s35 offen {gpol}", "s_waitcnt vmcnt(0)")
    tagcheck(64, True)
    E("v_cmp_ne_u32 vcc, 0, v50", "s_nop 1", "s_cmp_lg_u64 vcc, 0", "s_cbranch_scc1 L_h_qpoll")
    E("v_mov_b32 v65, v66", "v_lshlrev_b32 v5, 3, v0", f"ds_write_b64 v5, v[64:65] offset:{L_Q}", "s_branch L_h_qok")
    E.label("L_h_qfb")
    if odd >= 3:
        E("s_cmp_eq_u32 s86, 1", "s_cbranch_scc1 L_h_qfb2", "s_lshr_b32 s73, s27, 1", "s_mul_i32 s73, s73, 1792", "s_mov_b32 s69, 1",
          "buffer_load_dwordx4 v[8:11], v1, s[44:47], s73 offen nt", "buffer_load_dwordx4 v[12:15], v1, s[44:47], s73 offen offset:896 nt", "s_waitcnt vmcnt(0)", "s_branch L_h_ln")
        E.label("L_h_qfb2")
    E("s_lshl_b32 s35, s28, 9", "s_add_u32 s48, s10, s35", "s_addc_u32 s49, s11, 0", f"s_sub_u32 s50, {448*8192}, s35")
    E("v_lshrrev_b32 v5, 5, v0", "v_lshlrev_b32 v4, 13, v5", "v_and_b32 v6, 31, v0", "v_lshl_add_u32 v4, v6, 4, v4",
      "s_mul_i32 s35, s27, 896", "v_lshlrev_b32 v5, 1, v5", "v_add_u32 v5, s35, v5", "s_mov_b32 s37, 0")
    for r in range(8, 16): E(f"v_mov_b32 v{r}, 0")
    E.label("L_h_qfl")
    for u in range(4): E(f"buffer_load_dwordx4 v[{64+4*u}:{67+4*u}], v4, s[48:51], s37 offen nt", "s_add_u32 s37, s37, 16384", f"ds_read_u16 v{16+2*u}, v5 offset:{L_XN+4*u}")
    E("s_waitcnt vmcnt(0) lgkmcnt(0)")
    for u in range(4):
        E(f"v_lshlrev_b32 v{17+2*u}, 16, v{16+2*u}")
        for q in range(4): E(f"v_dot2c_f32_bf16 v{8+2*q}, v{16+2*u}, v{64+4*u+q}", f"v_dot2c_f32_bf16 v{9+2*q}, v{17+2*u}, v{64+4*u+q}")
    E("v_add_u32 v5, 16, v5", f"s_cmp_lt_u32 s37, {224*16384}", "s_cbranch_scc1 L_h_qfl")
    for e in range(8):
        E(f"v_mov_b32 v{16+e}, v{8+e}", f"v_permlane32_swap_b32 v{8+e}, v{16+e}", f"v_add_f32 v{8+e}, v{8+e}, v{16+e}")
    for q in range(4): E(f"v_cvt_pk_bf16_f32 v{8+q}, v{8+2*q}, v{9+2*q}")
    E("v_lshlrev_b32 v5, 4, v6", f"ds_write_b128 v5, v[8:11] offset:{L_Q}")
    E.label("L_h_qok")
    E("s_waitcnt lgkmcnt(0)")
    lds_inc(F_Q)
    stamp(2)
    if stamps: E("v_writelane_b32 v63, s76, 10")
    E("s_branch L_h_ffdone")
    E.label("L_h_ffn")
    if not hlate: lds_inc(F_Q)
    E.label("L_h_ffdone")
    E("s_nop 1")
    stamp(3)
    if w1:
        E("s_cmp_lt_u32 s29, 2", "s_cbranch_scc1 L_s1done", "s_mov_b64 exec, 0", "s_cmp_eq_u32 s29, 2", f"s_cbranch_scc1 {S1[0]}", f"s_branch {S1[1]}")
        E.label("L_s1r0"); E.label("L_s1r1")
        E("s_mov_b64 exec, -1")
        E.label("L_s1done")
    if wodelay: poll_lds(F_Q, 1 if hlate else 2)
    WB = 64
    E(f"s_mul_i32 s35, s28, {256*896}", "s_mul_i32 s36, s29, 224", "s_add_u32 s35, s35, s36",
      "s_add_u32 s48, s12, s35", "s_addc_u32 s49, s13, 0", f"s_sub_u32 s50, {4096*896}, s35", "s_mov_b32 s51, 0x20000")
    E("v_mul_u32_u24 v4, 4682, v0", "v_lshrrev_b32 v4, 16, v4", "v_mul_u32_u24 v5, 14, v4", "v_sub_u32 v5, v0, v5",
      "v_mul_u32_u24 v4, 896, v4", "v_lshl_add_u32 v4, v5, 4, v4", "v_cndmask_b32 v4, v2, v4, s[38:39]")
    E("v_lshrrev_b32 v5, 4, v0", "v_lshlrev_b32 v5, 11, v5", "v_bfe_u32 v6, v0, 2, 2", "v_mul_u32_u24 v6, 224, v6", "v_add_u32 v5, v5, v6",
      "v_and_b32 v6, 3, v0", "v_lshl_add_u32 v5, v6, 3, v5", "v_add_u32 v5, s33, v5")
    E("s_lshl_b32 s35, s29, 13", "v_lshlrev_b32 v6, 4, v0", "v_add_u32 v6, s35, v6", f"v_add_u32 v6, {L_B6}, v6")
    def wload(j):
        E(f"s_add_u32 m0, s33, {(j%16)*1024}", f"s_mov_b32 s37, {j*3584}", f"buffer_load_dwordx4 v4, s[48:51], s37 offen {wopol} lds")
    def wo_loop(hd):
        nis = 0
        for t in range(0 if nowo else 8):
            while nis < 8 * t + 8:
                if nis >= hd: E(f"s_waitcnt vmcnt({hd-1})")
                wload(nis); nis += 1
            for _ in range(min(hd - 1, 64 - nis)):
                E(f"s_waitcnt vmcnt({hd-1})"); wload(nis); nis += 1
            if w2:
                E(f"s_cmp_lg_u32 s29, {2 + (t & 1)}", f"s_cbranch_scc1 L_s2n{t}", "s_mov_b64 exec, 0", f"s_branch {S2[t]}")
                E.label(f"L_s2r{t}")
                E("s_mov_b64 exec, -1")
                E.label(f"L_s2n{t}")
            E(f"s_waitcnt vmcnt({nis - (8*t+8)})")
            for n in range(7):
                r = WB + 32 * n + 4 * t if n < 6 else 8
                for u in range(2):
                    E(f"ds_read_b64_tr_b16 v[{r+2*u}:{r+2*u+1}], v5 offset:{(t&1)*8192 + u*1024 + n*32}")
            E("s_waitcnt lgkmcnt(0)", f"ds_write_b128 v6, v[8:11] offset:{t*1024}")
    wo_loop(hd)
    TKO = 128 if dbgt else 0; CNT = TKO + 4
    stamp(4)
    E("s_cmp_lg_u32 s29, 1", "s_cbranch_scc1 L_h_f2done")
    if wmode == 2: E("s_xor_b32 s78, s2, 255")
    elif wmode == 1: E("s_cmp_eq_u32 s86, 0", "s_cbranch_scc1 L_h_f2done", "s_lshl_b32 s78, s27, 2", "s_add_u32 s78, s78, s88", "s_lshl_b32 s78, s78, 2", "s_add_u32 s78, s78, s87", "s_xor_b32 s78, s78, 127")
    else: E("s_cmp_lt_u32 s27, 4", "s_cbranch_scc1 L_h_f2done", "s_cmp_ge_u32 s77, 28", "s_cbranch_scc1 L_h_f2done", "s_sub_u32 s78, s27, 4", "s_mul_i32 s78, s78, 28", "s_add_u32 s78, s78, s77")
    E(f"s_cmp_ge_u32 s78, {0 if noffn else 98}", "s_cbranch_scc1 L_h_f2done",
      "s_mul_i32 s68, s78, 9363", "s_lshr_b32 s68, s68, 16", "s_mul_i32 s35, s68, 7", "s_sub_u32 s78, s78, s35")
    E(f"s_mul_i32 s35, s68, {128*896}", "s_lshl_b32 s36, s78, 7", "s_add_u32 s35, s35, s36",
      "s_add_u32 s48, s18, s35", "s_addc_u32 s49, s19, 0", f"s_sub_u32 s50, {1792*896}, s35")
    E("v_lshrrev_b32 v4, 3, v0", "v_mul_u32_u24 v4, 896, v4", "v_and_b32 v3, 7, v0", "v_lshl_add_u32 v4, v3, 4, v4")
    for j in range(0 if f2skip & 4 else 16):
        if j >= w2d: E(f"s_waitcnt vmcnt({w2d-1})")
        E(f"s_add_u32 m0, s33, {j*1024}", f"s_mov_b32 s37, {j*7168}", f"buffer_load_dwordx4 v4, s[48:51], s37 offen {w2pol} lds")
    E("v_lshlrev_b32 v4, 4, v0", "v_lshrrev_b32 v7, 4, v0", "v_lshlrev_b32 v7, 8, v7", "v_and_b32 v3, 15, v0", "v_lshl_add_u32 v7, v3, 3, v7",
      "s_lshl_b32 s35, s68, 12", f"s_add_u32 s35, s35, {W_HT}", f"s_mov_b32 s76, {spin}")
    if f2skip & 2: E("s_branch L_h_hgot")
    E.label("L_h_hpoll")
    E("s_cmp_eq_u32 s76, 0", "s_cbranch_scc1 L_h_hfb", "s_sub_u32 s76, s76, 1")
    for m in range(4): E(f"buffer_load_dwordx4 v[{28+4*m}:{31+4*m}], v4, s[52:55], s35 offen offset:{m*1024} {gpol}")
    for m in range(4):
        E(f"s_waitcnt vmcnt({3-m})"); tagcheck(28 + 4 * m, m == 0, "v24", "v25", "v26")
    E("v_cmp_ne_u32 vcc, 0, v24", "s_nop 1", "s_cmp_eq_u64 vcc, 0", "s_cbranch_scc1 L_h_hgot", f"s_sleep {hsleep}", "s_branch L_h_hpoll")
    E.label("L_h_hgot")
    for m in range(4): E(f"v_mov_b32 v{29+4*m}, v{30+4*m}", f"ds_write_b64 v7, v[{28+4*m}:{29+4*m}] offset:{L_H + (m&1)*1024 + (m>>1)*128}")
    E("s_branch L_h_hok")
    E.label("L_h_hfb")
    E("s_waitcnt vmcnt(0)")
    E("s_lshl_b32 s35, s68, 8", "s_add_u32 s48, s16, s35", "s_addc_u32 s49, s17, 0", f"s_sub_u32 s50, {448*3584}, s35")
    E("v_lshrrev_b32 v7, 4, v0", "v_mul_u32_u24 v4, 3584, v7", "v_and_b32 v3, 15, v0", "v_lshl_add_u32 v4, v3, 4, v4", "v_lshlrev_b32 v3, 4, v3", "v_lshlrev_b32 v7, 1, v7",
      "s_mov_b32 s76, 0")
    E.label("L_h_hfb2")
    E("s_mov_b32 s37, 0")
    for r in range(8, 16): E(f"v_mov_b32 v{r}, 0")
    E.label("L_h_hfl")
    E("buffer_load_dwordx4 v[44:47], v4, s[48:51], s37 offen nt", f"ds_read_u16 v16, v7 offset:{L_XN}", f"s_add_u32 s37, s37, {4*3584}", "v_add_u32 v7, 8, v7",
      "s_waitcnt vmcnt(0) lgkmcnt(0)", "v_lshlrev_b32 v17, 16, v16")
    for q in range(4): E(f"v_dot2c_f32_bf16 v{8+2*q}, v16, v{44+q}", f"v_dot2c_f32_bf16 v{9+2*q}, v17, v{44+q}")
    E(f"s_cmp_lt_u32 s37, {448*3584}", "s_cbranch_scc1 L_h_hfl")
    for e in range(8): E(f"v_mov_b32 v{16+e}, v{8+e}", f"v_permlane16_swap_b32 v{8+e}, v{16+e}", f"v_add_f32 v{8+e}, v{8+e}, v{16+e}")
    for e in range(8): E(f"v_mov_b32 v{16+e}, v{8+e}", f"v_permlane32_swap_b32 v{8+e}, v{16+e}", f"v_add_f32 v{8+e}, v{8+e}, v{16+e}")
    E(f"s_mov_b32 s35, {f32(-LOG2E)}")
    for e in range(8):
        rnd(f"v{8+e}"); silu(f"v{8+e}", f"v{8+e}")
    for u in range(4): E(f"v_cvt_pk_bf16_f32 v{8+u}, v{8+2*u}, v{9+2*u}")
    E(f"ds_write_b128 v3, v[8:11] offset:{L_H}", "v_add_u32 v3, 256, v3", "s_add_u32 s76, s76, 1", "s_cmp_lt_u32 s76, 8", "s_cbranch_scc1 L_h_hfb2")
    E.label("L_h_hok")
    stamp(2)
    E("v_and_b32 v7, 7, v0", "v_lshlrev_b32 v4, 8, v7", "v_lshrrev_b32 v3, 4, v0", "v_lshl_add_u32 v4, v3, 4, v4",
      "v_bfe_u32 v5, v0, 2, 2", "v_lshlrev_b32 v5, 7, v5", "v_and_b32 v8, 3, v0", "v_lshl_add_u32 v5, v8, 3, v5", "v_lshl_add_u32 v5, v3, 10, v5", "v_add_u32 v5, s33, v5",
      "s_waitcnt vmcnt(0) lgkmcnt(0)")
    for t in range(4): E(f"ds_read_b128 v[{8+4*t}:{11+4*t}], v4 offset:{L_H+64*t}")
    for n in range(4):
        d = 24 + 4 * n
        for t in range(4):
            for u in range(2): E(f"ds_read_b64_tr_b16 v[{40+4*t+2*u}:{41+4*t+2*u}], v5 offset:{t*4096 + u*512 + n*32}")
        E("s_waitcnt lgkmcnt(0)")
        for t in range(4): E(f"v_mfma_f32_16x16x32_bf16 v[{d}:{d+3}], v[{40+4*t}:{43+4*t}], v[{8+4*t}:{11+4*t}], {'0' if t == 0 else f'v[{d}:{d+3}]'}")
        E("s_nop 7")
    E(f"v_mul_u32_u24 v7, {14*1792}, v7", "v_lshl_add_u32 v7, v3, 4, v7", "v_bfe_u32 v3, v0, 3, 1", "v_lshl_add_u32 v7, v3, 6, v7",
      "s_mul_i32 s35, s68, 1792", "s_lshl_b32 s36, s78, 8", "s_add_u32 s35, s35, s36", f"s_add_u32 s35, s35, {W_FP}", "s_mov_b32 s42, 0xff00ff00", "s_mov_b32 s43, 0xff00ff00")
    for m in range(0 if f2skip & 8 else 2):
        for e in range(4): E(f"v_cndmask_b32 v{40+4*m+e}, v{24+8*m+e}, v{28+8*m+e}, s[42:43]")
        E(f"buffer_store_dwordx4 v[{40+4*m}:{43+4*m}], v7, s[52:55], s35 offen offset:{128*m} {spol}")
    if not f2skip & 1: E("s_waitcnt vmcnt(0)", "s_mov_b64 exec, 1", f"global_atomic_add v61, v62, s[22:23] offset:{CNT}", "s_mov_b64 exec, -1")
    E.label("L_h_f2done")
    if warm:
        E("s_cmp_lg_u32 s29, 2", "s_cbranch_scc1 L_h_nowarm", "s_mov_b64 exec, 0", "s_mov_b64 vcc, 0", "s_branch L_hop_0")
        E.label("L_h_warmed")
        E("s_mov_b64 exec, -1")
        E.label("L_h_nowarm")
    poll_lds(F_ST, 4)
    E(f"ds_read_b128 v[8:11], v61 offset:{L_ST}", f"ds_read_b128 v[12:15], v61 offset:{L_ST+16}", f"ds_read_b32 v3, v61 offset:{F_TAG}", "s_waitcnt lgkmcnt(0)")
    E("v_readfirstlane_b32 s70, v3")
    E("v_max_f32 v16, v8, v10", "v_max3_f32 v16, v16, v12, v14", f"s_mov_b32 s35, {CEXP}")
    for w in range(4): E(f"v_sub_f32 v{8+2*w}, v{8+2*w}, v16", f"v_mul_f32 v{8+2*w}, s35, v{8+2*w}", f"v_exp_f32 v{8+2*w}, v{8+2*w}")
    E("v_mul_f32 v17, v8, v9", "v_fmac_f32 v17, v10, v11", "v_fmac_f32 v17, v12, v13", "v_fmac_f32 v17, v14, v15")
    E("s_cmp_lg_u32 s29, 0", "s_cbranch_scc1 L_h_nost")
    E("s_lshl_b32 s35, s27, 9", "s_lshl_b32 s36, s30, 4", "s_add_u32 s35, s35, s36", f"s_add_u32 s35, s35, {W_ST}", "v_mov_b32 v18, s70", f"s_xor_b32 s36, s70, {TAGX}", "v_mov_b32 v19, s36")
    E("s_mov_b64 exec, 1", "buffer_store_dwordx4 v[16:19], v61, s[52:55], s35 offen sc1", "s_mov_b64 exec, -1")
    E.label("L_h_nost")
    E("s_mov_b32 s40, 0xffff0000", "s_mov_b32 s41, 0xffff0000", "s_waitcnt vmcnt(0)")
    E("v_cndmask_b32 v18, v8, v12, s[40:41]", "v_cndmask_b32 v19, v10, v14, s[40:41]")
    lds_inc(F_PUB)
    E("v_and_b32 v4, 7, v0", f"v_mul_u32_u24 v4, {O_STRIDE}, v4", "v_lshrrev_b32 v5, 4, v0", "v_lshl_add_u32 v4, v5, 4, v4")
    E("v_lshlrev_b32 v7, 4, v0", "v_and_b32 v5, 7, v0", "v_lshlrev_b32 v5, 4, v5")
    E("s_lshl_b32 s35, s27, 2", "s_add_u32 s35, s35, s29", "s_lshl_b32 s35, s35, 5", "s_add_u32 s35, s35, s30", f"s_lshl_b32 s35, s35, {9 if ypk else 10}", f"s_add_u32 s34, s35, {W_Y}")
    E(f"s_lshl_b32 s80, s27, {16 if ypk else 17}", f"s_lshl_b32 s35, s29, {12 if ypk else 13}", "s_add_u32 s80, s80, s35", f"s_add_u32 s80, s80, {W_Y}")
    E(f"s_mul_i32 s82, s27, {14*1792}", "s_mul_i32 s35, s29, 1792", "s_add_u32 s82, s82, s35", f"s_add_u32 s82, s82, {W_FP}")
    E("s_lshl_b32 s60, s27, 9", "s_lshl_b32 s35, s29, 7", "s_add_u32 s60, s60, s35", f"s_add_u32 s60, s60, {W_ST}", "s_mul_i32 s79, s27, 896", "s_mov_b32 s62, 0xff")
    E("v_lshlrev_b32 v60, 1, v0", "v_cmp_gt_u32 vcc, 48, v0", "v_cndmask_b32 v1, v2, v60, vcc")
    E("s_mov_b32 s42, 0", "s_mov_b32 s43, -1")
    E("s_mov_b32 s48, s20", "s_mov_b32 s49, s21", "s_mov_b32 s50, 7168", "s_mov_b32 s51, 0x20000")
    if ctl:
        E("s_cmp_lg_u32 s29, 2", "s_cbranch_scc1 L_h_noctl", f"s_mov_b32 s37, {4*cfirst}", "s_branch L_h_ctl2")
        E.label("L_h_ctl")
        E("s_lshl_b32 s35, s27, 5", "s_lshr_b32 s36, s37, 4", "s_lshl_b32 s36, s36, 2", "s_add_u32 s35, s35, s36", "v_mov_b32 v16, s35",
          "s_lshl_b32 s35, s37, 1", "s_and_b32 s35, s35, 24", "s_lshl_b32 s36, 1, s35", "v_mov_b32 v17, s36",
          "s_mov_b64 exec, 1", "global_atomic_add v17, v16, v17, s[22:23] offset:8 sc0", "s_mov_b64 exec, -1", "s_waitcnt vmcnt(0)",
          "v_readfirstlane_b32 s36, v17", "s_lshr_b32 s36, s36, s35", "s_and_b32 s36, s36, 0xff", f"s_cmp_ge_u32 s36, {ctl}", "s_cselect_b32 s36, 1, 0",
          "v_mov_b32 v3, s36", f"ds_write_b32 v61, v3 offset:{F_MODE}", f"s_add_u32 s37, s37, {4*cstep}", "s_cmp_gt_u32 s37, 24", "s_cbranch_scc1 L_h_noctl")
        E.label("L_h_ctl2")
        E("s_sleep 4", f"ds_read_b32 v3, v61 offset:{F_PROG}", "s_waitcnt lgkmcnt(0)", "v_readfirstlane_b32 s36, v3", "s_cmp_lt_u32 s36, s37", "s_cbranch_scc1 L_h_ctl2", "s_branch L_h_ctl")
        E.label("L_h_noctl")
    E("s_cmp_lg_u32 s29, 3", "s_cbranch_scc1 L_h_notk")
    poll_lds(F_PUB, 4)
    poll_lds(F_LAST, 4, slp=lsleep)
    E(f"s_lshl_b32 s35, s27, {4 if dbgt else 5}", "v_mov_b32 v16, 4", "v_writelane_b32 v16, s35, 0", "v_mov_b32 v3, 0", "v_writelane_b32 v3, 1, 0",
      f"s_mov_b64 exec, {1 if tk1 else 3}", f"global_atomic_add v17, v16, v3, s[22:23] offset:{TKO} sc0", "s_mov_b64 exec, -1")
    if tk1:
        E("s_waitcnt vmcnt(0)", "v_readlane_b32 s36, v17, 0", "s_sub_u32 s36, s36, 28", "s_cmp_lt_u32 s36, 4", "s_cbranch_scc0 L_h_notk",
          "s_mov_b64 exec, 2", f"global_atomic_add v17, v16, v3, s[22:23] offset:{TKO} sc0", "s_mov_b64 exec, -1")
    E.label("L_h_notk")
    E("s_waitcnt lgkmcnt(0)", "s_barrier")
    stamp(5)
    E.hop_begin("L_hop", warm)
    AF = 20
    for t in range(8): E(f"ds_read_b128 v[{AF+4*t}:{AF+4*t+3}], v4 offset:{L_O+64*t}")
    if ilv:
        Dn = [52, 56, 8, 12, WB + 32, WB + 36, WB + 40]
        def mf(n, t):
            d = Dn[n]; rb = WB + 32 * n if n < 6 else WB
            c = "0" if t == 0 else f"v[{d}:{d+3}]"
            E(f"v_mfma_f32_16x16x32_bf16 v[{d}:{d+3}], v[{AF+4*t}:{AF+4*t+3}], v[{rb+4*t}:{rb+4*t+3}], {c}")
        def post(n, o):
            d = Dn[n]
            E(f"v_add_f32 v{d}, v{d}, v{d+1}", f"v_add_f32 v{d+2}, v{d+2}, v{d+3}", f"v_mul_f32 v{o}, v18, v{d}", f"v_fmac_f32 v{o}, v19, v{d+2}")
        for t in range(8):
            E(f"s_waitcnt lgkmcnt({7-t+max(0,t-1)})")
            mf(0, t); mf(1, t)
            if t: E(f"ds_read_b128 v[{WB+4*t-4}:{WB+4*t-1}], v6 offset:{(t-1)*1024}")
            mf(2, t); mf(3, t)
        E(f"ds_read_b128 v[{WB+28}:{WB+31}], v6 offset:{7*1024}")
        for t in range(8):
            mf(4, t); mf(5, t)
            E(f"s_waitcnt lgkmcnt({7-t})")
            mf(6, t)
        RB0 = WB + 48
        if ypk: E("v_and_b32 v23, 1, v0", "v_lshlrev_b32 v23, 4, v23", "v_lshrrev_b32 v20, v23, s70", "v_lshrrev_b32 v21, 8, v20", "v_lshlrev_b32 v22, 3, v0", "s_mov_b32 s71, 0xffffff00")
        for n in range(7): post(n, RB0 + n)
    else:
        RB0 = 8
        R = [f"v{8+n}" for n in range(7)]
        def post(n):
            d = 52 + 4 * (n & 1)
            E(f"v_add_f32 v{d}, v{d}, v{d+1}", f"v_add_f32 v{d+2}, v{d+2}, v{d+3}", f"v_mul_f32 {R[n]}, v18, v{d}", f"v_fmac_f32 {R[n]}, v19, v{d+2}")
        for n in range(7):
            d = 52 + 4 * (n & 1)
            rb = WB + 32 * n if n < 6 else WB
            if n == 6: E("s_waitcnt lgkmcnt(0)")
            for t in range(8):
                if n == 0: E(f"s_waitcnt lgkmcnt({7-t})")
                c = "0" if t == 0 else f"v[{d}:{d+3}]"
                E(f"v_mfma_f32_16x16x32_bf16 v[{d}:{d+3}], v[{AF+4*t}:{AF+4*t+3}], v[{rb+4*t}:{rb+4*t+3}], {c}")
            if n == 1:
                for t in range(8): E(f"ds_read_b128 v[{WB+4*t}:{WB+4*t+3}], v6 offset:{t*1024}")
            if n >= 1: post(n - 1)
        post(6)
    E(f"v_mov_b32 v{RB0+7}, v{RB0+6}")
    for a in range(RB0, RB0 + 8, 2): E(f"v_permlane16_swap_b32 v{a}, v{a+1}")
    for a in range(RB0, RB0 + 8, 2): E(f"v_add_f32 v{a}, v{a}, v{a+1}")
    if ypk:
        E(f"v_cndmask_b32 v8, v{RB0}, v{RB0+2}, s[42:43]", f"v_cndmask_b32 v9, v{RB0+4}, v{RB0+6}, s[42:43]", "v_bfi_b32 v8, s71, v8, v20", "v_bfi_b32 v9, s71, v9, v21")
        E("s_waitcnt vmcnt(0)", "buffer_store_dwordx2 v[8:9], v22, s[52:55], s34 offen sc1")
    else:
        E(f"v_cndmask_b32 v8, v{RB0}, v{RB0+2}, s[42:43]", f"v_cndmask_b32 v10, v{RB0+4}, v{RB0+6}, s[42:43]", "v_mov_b32 v9, s70", "v_mov_b32 v11, s70")
        E("s_waitcnt vmcnt(0)", "buffer_store_dwordx4 v[8:11], v7, s[52:55], s34 offen sc1")
    stamp(6)
    E("s_cmp_lg_u32 s29, 3", "s_cbranch_scc1 L_h_waitv")
    E("v_readlane_b32 s36, v17, 0", "s_sub_u32 s37, s36, 28", "s_cmp_lt_u32 s37, 4", "s_cbranch_scc1 L_h_tk1", f"ds_write_b32 v61, v62 offset:{F_VERD}", "s_branch L_h_fin")
    E.label("L_h_tk1")
    E("s_add_u32 s35, s36, 1", "s_sub_u32 s36, s36, 26")
    E.label("L_h_tk2")
    E("v_readlane_b32 s37, v17, 1", f"s_cmp_ge_u32 s37, {0 if (noffn or f2skip & 1) else 98}", "s_cselect_b32 s35, s35, 0", f"s_cmp_ge_u32 s35, {1 if stw else 32}", "s_cbranch_scc1 L_h_tk3")
    E.hop_hold(True)
    E("s_mov_b64 exec, 3", f"global_atomic_add v17, v16, v61, s[22:23] offset:{TKO} sc0", "s_mov_b64 exec, -1")
    E.hop_hold(False)
    E("s_waitcnt vmcnt(0)", "v_readlane_b32 s35, v17, 0", "s_branch L_h_tk2")
    E.label("L_h_tk3")
    E("v_mov_b32 v3, s36", f"ds_write_b32 v61, v3 offset:{F_VERD}", "s_branch L_h_gotv")
    E.label("L_h_waitv")
    E(f"ds_read_b32 v3, v61 offset:{F_VERD}", "s_waitcnt lgkmcnt(0)", "v_readfirstlane_b32 s36, v3", "s_cmp_eq_u32 s36, 0", "s_cbranch_scc1 L_h_waitv")
    E("s_cmp_lt_u32 s36, 2", "s_cbranch_scc1 L_h_fin")
    E.label("L_h_gotv")
    stamp(7)
    E("s_sub_u32 s36, s36, 2", f"s_lshl_b32 s35, s36, {14 if ypk else 15}", "s_add_u32 s80, s80, s35", "s_add_u32 s81, s80, 4096", "s_mul_i32 s35, s36, 448", "s_add_u32 s82, s82, s35", "s_add_u32 s83, s82, 7168", "s_add_u32 s84, s82, 14336", "s_add_u32 s85, s82, 21504",
      "s_mul_i32 s35, s36, 224", "s_add_u32 s79, s79, s35")
    SR = 28 if ypk else 20
    E(f"buffer_load_dwordx4 v[{SR}:{SR+3}], v5, s[52:55], s60 offen sc1", "v_lshlrev_b32 v6, 2, v0", "s_cmp_ge_u32 s29, 2", "s_cselect_b64 vcc, -1, 0", "v_cndmask_b32 v3, v6, v2, vcc")
    FB = WB + 32
    for u in range(4): E(f"buffer_load_dword v{FB+2*u}, {'v6' if u < 3 else 'v3'}, s[52:55], s{82+u} offen sc1", f"buffer_load_dword v{FB+2*u+1}, {'v6' if u < 3 else 'v3'}, s[52:55], s{82+u} offen offset:256 sc1")
    E(f"buffer_load_ushort v24, v60, s[44:47], s79 offen {xpol}", f"buffer_load_ushort v25, v1, s[44:47], s79 offen offset:128 {xpol}", "s_mov_b32 s63, 1")
    E.hop_hold(True)
    E.label("L_h_round")
    E("s_mov_b64 vcc, -1")
    E.hop_hold(False); E.hop_kind("vccz")
    for u in range(8):
        E(f"s_bitcmp1_b32 s62, {7-u}", "s_cselect_b64 exec, -1, 0", (f"buffer_load_dwordx2 v[{WB+4*u}:{WB+4*u+1}], v22, s[52:55], s80 offen offset:{u*512} sc1" if ypk else f"buffer_load_dwordx4 v[{WB+4*u}:{WB+4*u+3}], v7, s[52:55], s{80+(u>>2)} offen offset:{(u&3)*1024} sc1"))
    E("s_mov_b64 exec, -1")
    E.hop_kind("execz")
    E("s_cmp_eq_u32 s63, 0", "s_cbranch_scc1 L_h_r2", "s_mov_b32 s63, 0", "s_waitcnt vmcnt(18)")
    if stw:
        E(f"s_sub_u32 s72, s70, {DELTA}", f"s_mov_b32 s74, {DELTA + WINDOW}", f"s_mov_b32 s75, {TAGX}",
          f"v_subrev_u32 v12, s72, v{SR+2}", f"v_xor_b32 v13, v{SR+2}, v{SR+3}", "v_cmp_le_u32 vcc, s74, v12", "v_cmp_ne_u32 s[40:41], s75, v13", "s_nop 1", "s_or_b64 vcc, vcc, s[40:41]",
          "s_cmp_eq_u64 vcc, 0" if stw == 1 else "s_cmp_eq_u32 s72, s70", "s_cbranch_scc1 L_h_stok", f"s_lshl_b32 s35, s27, {4 if dbgt else 5}", "v_mov_b32 v12, s35")
        E.label("L_h_stw")
        E.hop_hold(True)
        E("s_mov_b64 exec, 1", f"global_atomic_add v13, v12, v61, s[22:23] offset:{TKO} sc0", "s_mov_b64 exec, -1")
        E.hop_hold(False)
        E("s_waitcnt vmcnt(0)", "v_readfirstlane_b32 s35, v13", "s_cmp_lt_u32 s35, 32", "s_cbranch_scc1 L_h_stw",
          f"buffer_load_dwordx4 v[{SR}:{SR+3}], v5, s[52:55], s60 offen sc1", "s_waitcnt vmcnt(0)")
        E.label("L_h_stok")
    E(f"s_mov_b32 s36, {CEXP}")
    m, l = f"v{SR}", f"v{SR+1}"
    E(f"v_mov_b32_dpp v12, {m} quad_perm:[1,0,3,2] {DPPF}", f"v_mov_b32_dpp v13, {l} quad_perm:[1,0,3,2] {DPPF}", f"v_max_f32 v14, {m}, v12",
      f"v_sub_f32 {m}, {m}, v14", "v_sub_f32 v12, v12, v14", f"v_mul_f32 {m}, s36, {m}", "v_mul_f32 v12, s36, v12", f"v_exp_f32 {m}, {m}", "v_exp_f32 v12, v12",
      f"v_mul_f32 v14, {m}, {l}", "v_mul_f32 v13, v12, v13", "v_add_f32 v14, v14, v13", "v_rcp_f32 v15, v14", f"v_mul_f32 v12, {m}, v15", f"v_fma_f32 v13, -v12, v14, {m}", f"v_fma_f32 {m}, v13, v15, v12")
    E("s_waitcnt vmcnt(10)", f"v_add_f32 v14, v{FB}, v{FB+2}", f"v_add_f32 v15, v{FB+1}, v{FB+3}")
    for u in range(2, 4):
        for e in range(2): E(f"v_add_f32 v{14+e}, v{14+e}, v{FB+2*u+e}")
    E.label("L_h_r2")
    E("v_mov_b32 v12, 0", "v_mov_b32 v13, 0", "v_mov_b32 v16, 0", "s_mov_b32 s37, 0x0c0c0400")
    for u in range(8):
        r = WB + 4 * u
        if ypk:
            E(f"v_mov_b32_dpp v17, v30 row_newbcast:{u} {DPPF}", f"s_waitcnt vmcnt({7-u})", f"v_perm_b32 v{r+2}, v{r+1}, v{r}, s37", "v_bfe_u32 v17, v17, v23, 16",
              f"v_and_b32 v{r+3}, s71, v{r}", f"v_cmp_ne_u32 vcc, v17, v{r+2}", f"v_and_b32 v{r+2}, s71, v{r+1}",
              f"v_fmac_f32_dpp v12, v28, v{r+3} row_newbcast:{u} {DPPF}", f"v_fmac_f32_dpp v13, v28, v{r+2} row_newbcast:{u} {DPPF}", "v_addc_co_u32 v16, vcc, v16, v16, vcc")
            continue
        E(f"s_waitcnt vmcnt({7-u})", f"v_xor_b32_dpp v17, v22, v{r+1} row_newbcast:{u} {DPPF}", f"v_bitop3_b32 v17, v17, v{r+1}, v{r+3} bitop3:0xf6", "v_cmp_ne_u32 vcc, 0, v17",
          f"v_fmac_f32_dpp v12, v20, v{r} row_newbcast:{u} {DPPF}", f"v_fmac_f32_dpp v13, v20, v{r+2} row_newbcast:{u} {DPPF}", "v_addc_co_u32 v16, vcc, v16, v16, vcc")
    E("v_cmp_ne_u32 vcc, 0, v16", "s_nop 1", "s_cmp_eq_u64 vcc, 0", "s_cbranch_scc1 L_h_all")
    for r in (8, 4, 2, 1): E(f"v_or_b32_dpp v16, v16, v16 row_ror:{r} {DPPF}")
    E("v_mov_b32 v17, v16", "v_permlane16_swap_b32 v16, v17", "v_or_b32 v16, v16, v17", "v_mov_b32 v17, v16", "v_permlane32_swap_b32 v16, v17", "v_or_b32 v16, v16, v17",
      "v_readfirstlane_b32 s62, v16", "s_branch L_h_round")
    E.label("L_h_all")
    E("s_cmp_eq_u32 s29, 0", "s_cbranch_scc1 L_h_red", "v_add_u32 v3, s33, v7", "ds_write_b128 v3, v[12:15]", "s_waitcnt lgkmcnt(0)")
    E.hop_hold(True)
    lds_inc(F_RED)
    E.hop_hold(False)
    E("s_branch L_h_fin")
    E.label("L_h_red")
    E(f"ds_read_b32 v3, v61 offset:{F_RED}", "s_waitcnt lgkmcnt(0)", "v_readfirstlane_b32 s36, v3", "s_cmp_lg_u32 s36, 3", "s_cbranch_scc1 L_h_red")
    E(f"v_add_u32 v3, {L_STG + 16384}, v7", "ds_read_b128 v[28:31], v3", "ds_read_b128 v[32:35], v3 offset:16384", "ds_read_b128 v[36:39], v3 offset:32768",
      "v_lshlrev_b32 v24, 16, v24", "v_lshlrev_b32 v25, 16, v25", "s_waitcnt lgkmcnt(0)")
    for e in range(4): E(f"v_add_f32 v{12+e}, v{12+e}, v{28+e}", f"v_add_f32 v{32+e}, v{32+e}, v{36+e}")
    for e in range(4): E(f"v_add_f32 v{12+e}, v{12+e}, v{32+e}")
    for e in range(4): rnd(f"v{12+e}")
    E("v_add_f32 v12, v24, v12", "v_add_f32 v13, v25, v13")
    rnd("v12"); rnd("v13")
    E("v_add_f32 v12, v12, v14", "v_add_f32 v13, v13, v15", "v_cvt_pk_bf16_f32 v12, v12, v13",
      "buffer_store_short v12, v60, s[48:51], s79 offen", "buffer_store_short_d16_hi v12, v1, s[48:51], s79 offen offset:128")
    E.hop_end("L_h_warmed")
    E.label("L_h_fin")
    E("s_waitcnt lgkmcnt(0)")
    if diag is not None:
        E("s_waitcnt vmcnt(0)")
        stamp(8)
        E("s_cmp_lg_u32 s29, 0", "s_cbranch_scc1 L_end")
        if dwg is not None: E(f"s_cmp_lg_u32 s2, {dwg}", "s_cbranch_scc1 L_end")
        if diag == 0: E("s_mov_b32 s35, s90")
        elif diag < 10: E("v_lshlrev_b32 v3, 2, v0", f"ds_read_b32 v4, v3 offset:{L_QP}", "s_waitcnt lgkmcnt(0)", f"v_readlane_b32 s35, v4, {diag}")
        else: E(f"v_readlane_b32 s35, v63, {diag-10}")
        E.label("L_diag")
        E("s_sleep 2", "s_memrealtime s[92:93]", "s_waitcnt lgkmcnt(0)", "s_sub_u32 s36, s92, s35", "s_cmp_lt_u32 s36, 15000", "s_cbranch_scc1 L_diag", "s_endpgm")
    if dbgt:
        E("s_waitcnt vmcnt(0)")
        stamp(8)
        E("s_cmp_lg_u32 s29, 0", "s_cbranch_scc1 L_end")
        E("s_sleep 127", "s_sleep 127", "s_sleep 127")
        E("v_lshlrev_b32 v3, 2, v0", f"ds_read_b32 v4, v3 offset:{L_QP}", "s_not_b32 s35, s90", "s_waitcnt lgkmcnt(0)", "v_writelane_b32 v4, s35, 0")
        E("s_mov_b64 exec, 31", "global_atomic_umax v3, v4, s[22:23] offset:8")
        E("s_mov_b64 exec, 0x3e4", "global_atomic_umax v3, v63, s[22:23] offset:20", "s_mov_b64 exec, 2", "global_atomic_umax v3, v63, s[22:23] offset:56", "s_endpgm")
    if stamps:
        E("s_waitcnt vmcnt(0)")
        stamp(8)
        E("s_add_u32 s24, s24, 0x20000000", "s_addc_u32 s25, s25, 0")
        E("s_cmp_lg_u32 s29, 1", "s_cbranch_scc1 L_st2")
        E("v_writelane_b32 v63, s90, 0", "s_lshl_b32 s35, s2, 8", "v_lshlrev_b32 v3, 2, v0", "v_add_u32 v3, s35, v3", "v_add_u32 v3, 0x30000, v3", "global_store_dword v3, v63, s[24:25]")
        E.label("L_st2")
        E("s_cmp_lg_u32 s29, 0", "s_cbranch_scc1 L_end")
        E("v_writelane_b32 v63, s90, 0", "s_lshl_b32 s35, s2, 8", "v_lshlrev_b32 v3, 2, v0", "v_add_u32 v3, s35, v3", "v_add_u32 v3, 0x50000, v3", "global_store_dword v3, v63, s[24:25]")
        E("v_mov_b32 v8, s90", "v_mov_b32 v9, s91", "v_mov_b32 v10, s92", "v_mov_b32 v11, s93", "s_lshl_b32 s35, s2, 4", "v_mov_b32 v12, s35", "s_mov_b64 exec, 1",
          "global_store_dwordx4 v12, v[8:11], s[24:25]", "s_getreg_b32 s36, hwreg(HW_REG_XCC_ID)", "v_mov_b32 v8, s36", "v_add_u32 v12, 0x8000, v12", "global_store_dword v12, v8, s[24:25]")
    E.label("L_end")
    E("s_endpgm")
    E.raw('.section .rodata,"a"'); E.raw(".p2align 6"); E.raw(f".amdhsa_kernel {KN}")
    for l in ("next_free_vgpr 256", "next_free_sgpr 102", "accum_offset 256", "float_denorm_mode_32 3", "group_segment_fixed_size 0", "kernarg_size 88",
              "user_sgpr_count 2", "user_sgpr_kernarg_segment_ptr 1", "system_sgpr_workgroup_id_x 1"):
        E.raw("  .amdhsa_" + l)
    E.raw(".end_amdhsa_kernel")
    return E.text()

if __name__ == "__main__":
    cfgs = json.loads(sys.argv[1])
    for name, kw in cfgs.items(): open(name, "w").write(gen(**kw))
```
